```python
import torch

def _softmax(x, axis=-1):
    return torch.softmax(x, dim=axis)
def _gelu(x):
    return torch.nn.functional.gelu(x, approximate="tanh")
def _silu(x):
    return torch.nn.functional.silu(x)
def _sigmoid(x):
    return torch.sigmoid(x)
def _layernorm(x, axis=-1, eps=1e-5):
    m = x.mean(dim=axis, keepdim=True)
    v = x.var(dim=axis, keepdim=True, unbiased=False)
    return (x - m) / torch.sqrt(v + eps)
def _scatter_add(tgt, idx, src, axis=0):
    return tgt.clone().index_add_(axis, idx, src)
def _segment_sum(src, seg, n):
    out = torch.zeros((n,) + src.shape[1:], dtype=src.dtype)
    return out.index_add_(0, seg, src)
def _pad(x, pw):
    flat = tuple(v for pair in reversed(pw) for v in pair)
    return torch.nn.functional.pad(x, flat)

kernel_name = 'standalone__self_sup_conv_stem_hubert__speech'

def setup_inputs():

    _w = (lambda a: (lambda t: t.to(torch.bfloat16) if t.is_floating_point() else t)(torch.as_tensor(a)))
    B, T, D, K = 2, 1000, 512, 15
    scale = (1.0 / (K * D)) ** 0.5
    return {
        "x": _w((lambda *s: torch.randn(*s, dtype=torch.bfloat16) * 0.05)(B, T, D)),
        "w": _w((lambda *s: torch.randn(*s, dtype=torch.bfloat16) * 0.05)(K, D, D) * scale),
        "b": _w((lambda *s: torch.randn(*s, dtype=torch.bfloat16) * 0.05)(D) * 0.1),
        "gamma": _w(torch.ones((D,), dtype=float)),
        "beta": _w(torch.zeros((D,), dtype=float)),
    }

def reference(x, w, b, gamma, beta):
    B, T, D = x.shape
    K = w.shape[0]
    s = 2
    L = (T - K) // s + 1
    y = torch.einsum('blc,cd->bld', x[:, 0 : s * L : s, :], w[0])
    for i in range(1, K):
        y = y + torch.einsum('blc,cd->bld', x[:, i : i + s * L : s, :], w[i])
    y = y + b[None, None, :]
    mu = y.mean(1, keepdims=True)
    var = ((y - mu) ** 2).mean(1, keepdims=True)
    yn = (y - mu) / torch.sqrt(var + 1e-5)
    yn = yn * gamma[None, None, :] + beta[None, None, :]
    return _gelu(yn)
```

```python
import sys, struct

NAME = "standalone__self_sup_conv_stem_hubert__speech"
XBYTES = 2*1000*512*2
WBYTES = 15*512*512*2
OUTBYTES = 2*493*512*2
XREG = 35360
RING0 = 2*XREG
R = 22
D = 20
LDS_BYTES = RING0 + 4*R*1024

class Asm:
    def __init__(self): self.L = []
    def __call__(self, s):
        for ln in s.strip("\n").split("\n"): self.L.append("    " + ln.strip() if not ln.strip().endswith(":") else ln.strip())
    def raw(self, s): self.L.append(s)
    def text(self): return "\n".join(self.L) + "\n"

def steps_list():
    st = []
    for p in (0, 1):
        for c in range(4):
            taps = list(range(p, 15, 2))
            for a, i in enumerate(taps):
                st.append((p, c, a, i, len(taps)))
    return st

def gemm_kernel(A, timing=False):
    SX, SW, SWS = 8, 12, 16
    s_w = 20
    s_ring = 21
    s_xm0 = 22
    s_tmp = 23
    s_so = 24
    v_lane = 1
    v_xdma = 2
    v_wdma = 3
    v_w1 = 4
    v_w2 = 5
    v_xr = 6
    v_xr1 = 7
    v_st = 8
    WF = 12
    XF = 24
    ACC = 88
    A(f"""
    s_cmp_ge_u32 s2, 256
    s_cbranch_scc1 L_gemm_end
    s_load_dwordx4 s[4:7], s[0:1], 0
    s_load_dwordx2 s[16:17], s[0:1], 56
    v_lshrrev_b32 v9, 6, v0
    v_and_b32 v{v_lane}, 63, v0
    v_readfirstlane_b32 s{s_w}, v9
    """)
    if timing:
        A("s_memrealtime s[40:41]")
    A(f"""
    s_and_b32 s25, s2, 7
    s_lshr_b32 s26, s2, 3
    s_lshr_b32 s27, s25, 2            ; b
    s_and_b32 s28, s25, 3
    s_lshl_b32 s28, s28, 1
    s_and_b32 s29, s26, 1
    s_add_u32 s28, s28, s29           ; cb
    s_lshr_b32 s29, s26, 1
    s_and_b32 s29, s29, 3             ; kq
    s_lshr_b32 s30, s26, 3            ; rb
    """)
    A(f"""
    s_mul_i32 s31, s27, 1024000
    s_lshl_b32 s32, s30, 18
    s_add_u32 s31, s31, s32
    s_lshl_b32 s32, s29, 8
    s_add_u32 s31, s31, s32
    s_lshl_b32 s32, s{s_w}, 13
    s_add_u32 s31, s31, s32
    v_lshrrev_b32 v9, 4, v{v_lane}
    v_lshlrev_b32 v9, 11, v9
    v_and_b32 v10, 15, v{v_lane}
    v_lshlrev_b32 v10, 4, v10
    v_add3_u32 v{v_xdma}, v9, v10, s31
    """)
    A(f"""
    s_lshl_b32 s31, s29, 17
    s_lshl_b32 s32, s28, 7
    s_add_u32 s31, s31, s32
    s_lshl_b32 s32, s{s_w}, 5
    s_add_u32 s31, s31, s32
    v_lshrrev_b32 v9, 1, v{v_lane}
    v_lshrrev_b32 v10, 3, v9
    v_and_b32 v10, 1, v10
    v_lshlrev_b32 v10, 2, v10
    v_xor_b32 v9, v9, v10
    v_lshlrev_b32 v9, 10, v9
    v_and_b32 v10, 1, v{v_lane}
    v_lshlrev_b32 v10, 4, v10
    v_add3_u32 v{v_wdma}, v9, v10, s31
    """)
    A(f"""
    s_mul_i32 s{s_ring}, s{s_w}, {R*1024}
    s_add_u32 s{s_ring}, s{s_ring}, {RING0}
    s_lshl_b32 s31, s{s_w}, 10
    s_lshr_b32 s32, s{s_w}, 1
    s_lshl_b32 s32, s32, 5
    s_add_u32 s{s_xm0}, s31, s32       ; j=w: j*1024 + (j>>1)*32
    """)
    A(f"""
    v_lshrrev_b32 v9, 4, v{v_lane}          ; kg
    v_and_b32 v10, 1, v9
    v_lshlrev_b32 v10, 2, v10               ; 4*(kg&1)
    v_lshl_add_u32 v10, v9, 3, v10
    v_bfe_u32 v11, v{v_lane}, 2, 2          ; r'
    v_add_u32 v10, v10, v11
    v_lshlrev_b32 v10, 5, v10
    v_and_b32 v11, 3, v{v_lane}
    v_lshl_add_u32 v10, v11, 3, v10
    v_xor_b32 v11, 128, v10
    v_add_u32 v{v_w1}, s{s_ring}, v10
    v_add_u32 v{v_w2}, s{s_ring}, v11
    """)
    A(f"""
    v_and_b32 v10, 15, v{v_lane}
    v_mul_u32_u24 v10, {8*256+32}, v10
    v_lshl_add_u32 v{v_xr}, v9, 4, v10
    v_add_u32 v{v_xr1}, {XREG}, v{v_xr}
    """)
    A(f"""
    s_lshl_b32 s31, s27, 3
    s_add_u32 s31, s31, s28           ; g
    s_lshl_b32 s31, s31, 4
    s_lshl_b32 s32, s{s_w}, 2
    s_add_u32 s31, s31, s32           ; g*16 + 4w
    s_lshl_b32 s31, s31, 15
    s_lshl_b32 s32, s30, 2
    s_add_u32 s32, s32, s29           ; src
    s_lshl_b32 s32, s32, 11
    s_add_u32 s31, s31, s32
    v_lshlrev_b32 v9, 15, v9          ; kg*32768
    v_and_b32 v10, 15, v{v_lane}
    v_lshlrev_b32 v10, 4, v10
    v_add3_u32 v{v_st}, v9, v10, s31
    """)
    for k in range(32): A(f"v_mov_b32 v{ACC+k}, 0")
    A(f"""
    s_waitcnt lgkmcnt(0)
    s_mov_b32 s{SX}, s4
    s_mov_b32 s{SX+1}, s5
    s_mov_b32 s{SX+2}, {XBYTES}
    s_mov_b32 s{SX+3}, 0x20000
    s_mov_b32 s{SW}, s6
    s_mov_b32 s{SW+1}, s7
    s_mov_b32 s{SW+2}, {WBYTES}
    s_mov_b32 s{SW+3}, 0x20000
    s_mov_b32 s{SWS+2}, {16*16*32768}
    s_mov_b32 s{SWS+3}, 0x20000
    """)
    steps = steps_list()
    NS = len(steps)
    vm = []
    def wdma(j):
        p, c, a, i, nt = steps[j]
        A(f"s_mov_b32 s{s_so}, {i*524288 + c*32768}")
        A(f"s_add_u32 m0, s{s_ring}, {(j % R)*1024}")
        A(f"buffer_load_dwordx4 v{v_wdma}, s[{SW}:{SW+3}], s{s_so} offen lds")
        vm.append(("w", j))
    def xdma(p, jj):
        if jj < 8:
            A(f"s_mov_b32 s{s_so}, {jj*32768 + p*1024}")
            A(f"s_add_u32 m0, s{s_xm0}, {p*XREG + jj*(4096+64)}")
        else:
            A(f"s_and_b32 s{s_tmp}, s{s_w}, 2")
            A(f"s_lshl_b32 s{s_so}, s{s_tmp}, 13")
            A(f"s_sub_u32 s{s_so}, {jj*32768 + p*1024}, s{s_so}")
            A(f"s_lshr_b32 s{s_tmp}, s{s_tmp}, 1")
            A(f"s_mul_i32 s{s_tmp}, s{s_tmp}, {2048+32}")
            A(f"s_sub_u32 s{s_tmp}, s{s_xm0}, s{s_tmp}")
            A(f"s_add_u32 m0, s{s_tmp}, {p*XREG + jj*(4096+64)}")
        A(f"buffer_load_dwordx4 v{v_xdma}, s[{SX}:{SX+3}], s{s_so} offen lds")
        vm.append(("x", p, jj))
    def vmwait_for(tag):
        idx = vm.index(tag)
        n = len(vm) - 1 - idx
        return f"s_waitcnt vmcnt({n})"
    wdma(0); wdma(1)
    for jj in range(9): xdma(0, jj)
    for j in range(2, D): wdma(j)
    if timing:
        A("s_memrealtime s[42:43]")
    A(vmwait_for(("x", 0, 8)))
    A("s_barrier")
    if timing:
        A("s_memrealtime s[44:45]")
    chunks = []
    j0 = 0
    for p in (0, 1):
        for c in range(4):
            nt = 8 if p == 0 else 7
            chunks.append((p, c, nt, j0)); j0 += nt
    base = []
    bcur = 0
    for (p, c, nt, j0) in chunks:
        base.append(bcur); bcur += nt + 7
    def xslot(ci, u): return XF + 4*((base[ci] + u) % 16)
    def xread(ci, u):
        p, c, nt, _ = chunks[ci]
        off = u*256 + (u >> 3)*32 + c*64
        va = v_xr if p == 0 else v_xr1
        s = xslot(ci, u)
        return f"ds_read_b128 v[{s}:{s+3}], v{va} offset:{off}"
    def wread(j):
        b = WF + 4*(j % 3)
        off = (j % R)*1024
        return [f"ds_read_b64_tr_b16 v[{b}:{b+1}], v{v_w1} offset:{off}",
                f"ds_read_b64_tr_b16 v[{b+2}:{b+3}], v{v_w2} offset:{off}"]
    xl = []
    for ci, (p, c, nt, j0) in enumerate(chunks):
        for u in range(nt + 7):
            first_use = j0 + max(0, u - 7)
            xl.append((ci, u, first_use))
    def last_use(ci, u):
        p, c, nt, j0 = chunks[ci]
        return j0 + min(u, nt - 1)
    lg = []
    out_lines = []
    issued = set()
    A(vmwait_for(("w", 1)))
    for ln in wread(0): A(ln); lg.append(("w", 0))
    for u in range(8): A(xread(0, u)); lg.append(("x", 0, u)); issued.add((0, u))
    for ln in wread(1): A(ln); lg.append(("w", 1))
    nxt = 8
    xodd_barrier_done = False
    xodd_list = list(range(9))
    for j, (p, c, a, i, nt) in enumerate(steps):
        ci = p*4 + c
        fills = []
        dm = None
        if j + D < NS: dm = ("w", j + D)
        xo = None
        if j < 9: xo = j
        xr = []
        budget = 2
        while nxt < len(xl) and budget > 0:
            c2, u2, fu = xl[nxt]
            if chunks[c2][0] == 1 and not xodd_barrier_done: break
            if nxt >= 16:
                pc, pu, _ = xl[nxt - 16]
                if last_use(pc, pu) >= j: break
            xr.append((c2, u2)); nxt += 1; budget -= 1
        do_bar = (j == 22)
        need = [("w", j)] + [("x", ci, a + t) for t in range(8)]
        last_needed = max(len(lg) - 1 - lg[::-1].index(n) for n in need)
        nwait = len(lg) - 1 - last_needed
        A(f"s_waitcnt lgkmcnt({min(nwait,15)})")
        wb = WF + 4*(j % 3)
        mf = []
        for t in range(8):
            xs = xslot(ci, a + t)
            acc = ACC + 4*t
            mf.append(f"v_mfma_f32_16x16x32_bf16 v[{acc}:{acc+3}], v[{wb}:{wb+3}], v[{xs}:{xs+3}], v[{acc}:{acc+3}]")
        slots = [[] for _ in range(8)]
        if j + 2 < NS:
            slots[0].append(("vmw", j + 2))
            wr = wread(j + 2)
            slots[0].append(("i", wr[0])); slots[0].append(("lg", ("w0", j + 2))); slots[1].append(("i", wr[1])); slots[1].append(("lg", ("w", j + 2)))
        k = 2
        for (c2, u2) in xr:
            slots[k].append(("i", xread(c2, u2))); slots[k].append(("lg", ("x", c2, u2))); k += 1
        if dm: slots[4].append(("wdma", j + D))
        if xo is not None: slots[6].append(("xdma", xo))
        if do_bar: slots[7].append(("bar",))
        for t in range(8):
            A(mf[t])
            for it in slots[t]:
                if it[0] == "i": A(it[1])
                elif it[0] == "lg": lg.append(it[1])
                elif it[0] == "vmw": A(vmwait_for(("w", it[1])))
                elif it[0] == "wdma": wdma(it[1])
                elif it[0] == "xdma": xdma(1, it[1])
                elif it[0] == "bar":
                    A(vmwait_for(("x", 1, 8)))
                    A("s_barrier")
                    xodd_barrier_done = True
    assert nxt == len(xl), (nxt, len(xl))
    if timing:
        A("s_memrealtime s[46:47]")
    A("s_nop 7")
    for t in range(8):
        acc = ACC + 4*t
        A(f"buffer_store_dwordx4 v[{acc}:{acc+3}], v{v_st}, s[{SWS}:{SWS+3}], 0 offen offset:{t*256}")
    if timing:
        A("s_waitcnt vmcnt(0)")
        A("s_memrealtime s[48:49]")
        A("s_waitcnt lgkmcnt(0)")
        A(f"""
        s_mov_b32 s{SWS+2}, 0x10000000
        s_lshl_b32 s31, s2, 2
        s_add_u32 s31, s31, s{s_w}
        s_lshl_b32 s31, s31, 5
        s_add_u32 s31, s31, 0x1000000
        v_mov_b32 v9, s31
        v_mov_b32 v12, s40
        v_mov_b32 v13, s42
        v_mov_b32 v14, s44
        v_mov_b32 v15, s46
        v_mov_b32 v16, s48
        v_mov_b32 v17, s41
        v_cmp_eq_u32 vcc, 0, v{v_lane}
        s_and_saveexec_b64 s[34:35], vcc
        buffer_store_dwordx4 v[12:15], v9, s[{SWS}:{SWS+3}], 0 offen
        buffer_store_dwordx2 v[16:17], v9, s[{SWS}:{SWS+3}], 0 offen offset:16
        """)
    A("L_gemm_end:")
    A("s_endpgm")

def fin_kernel(A):
    SWS, SO = 8, 12
    A(f"""
    s_cmp_ge_u32 s2, 256
    s_cbranch_scc1 L_fin_end
    s_load_dwordx4 s[16:19], s[0:1], 16
    s_load_dwordx4 s[20:23], s[0:1], 32
    s_load_dwordx2 s[8:9], s[0:1], 56        ; ws
    v_lshrrev_b32 v1, 6, v0
    v_and_b32 v2, 63, v0                     ; lane
    s_lshr_b32 s24, s2, 4                    ; g
    s_and_b32 s25, s2, 15                    ; o
    s_lshr_b32 s26, s24, 3                   ; b
    s_and_b32 s27, s24, 7                    ; cb
    s_lshl_b32 s28, s2, 15
    v_lshlrev_b32 v3, 13, v1
    v_lshl_add_u32 v3, v2, 4, v3
    v_add_u32 v3, s28, v3
    s_lshl_b32 s29, s27, 6
    s_lshl_b32 s30, s25, 2
    s_add_u32 s29, s29, s30
    s_lshl_b32 s29, s29, 1                   ; *2 bytes
    s_waitcnt lgkmcnt(0)
    s_mov_b32 s10, {16*16*32768}
    s_mov_b32 s11, 0x20000
    s_add_u32 s16, s16, s29
    s_addc_u32 s17, s17, 0
    s_add_u32 s18, s18, s29
    s_addc_u32 s19, s19, 0
    s_add_u32 s20, s20, s29
    s_addc_u32 s21, s21, 0
    s_load_dwordx2 s[32:33], s[16:17], 0
    s_load_dwordx2 s[34:35], s[18:19], 0     ; gamma
    s_load_dwordx2 s[36:37], s[20:21], 0     ; beta
    s_mov_b32 s12, s22
    s_mov_b32 s13, s23
    s_mov_b32 s14, {OUTBYTES}
    s_mov_b32 s15, 0x20000
    """)
    for h in range(2):
        for kq in range(4):
            b = 8 + (h*4 + kq)*4
            off = kq*2048 + h*1024
            A(f"buffer_load_dwordx4 v[{b}:{b+3}], v3, s[8:11], 0 offen offset:{off}" if off < 4096 else
              f"s_mov_b32 s31, {off}\nbuffer_load_dwordx4 v[{b}:{b+3}], v3, s[8:11], s31 offen")
    A(f"""
    v_and_b32 v4, 15, v2
    v_lshlrev_b32 v4, 3, v4
    v_lshrrev_b32 v5, 4, v2
    v_add_u32 v4, v4, v5
    v_lshl_add_u32 v4, v1, 7, v4            ; l for h=0
    v_add_u32 v5, 4, v4                     ; l for h=1
    v_cmp_gt_u32 s[40:41], 493, v4 
    """.replace("v_cmp_gt_u32 s[40:41], 493, v4", "s_movk_i32 s38, 493\nv_cmp_gt_u32 s[40:41], s38, v4\nv_cmp_gt_u32 s[42:43], s38, v5"))
    A("s_waitcnt lgkmcnt(0)")
    for k, src in enumerate((32, 34, 36)):
        d = 44 + 4*k
        A(f"""
        s_lshl_b32 s{d}, s{src}, 16
        s_and_b32 s{d+1}, s{src}, 0xffff0000
        s_lshl_b32 s{d+2}, s{src+1}, 16
        s_and_b32 s{d+3}, s{src+1}, 0xffff0000
        """)
    A("s_waitcnt vmcnt(0)")
    for h in range(2):
        b = 8 + h*16
        for e in range(4):
            A(f"v_add_f32 v{b+e}, v{b+e}, v{b+4+e}")
            A(f"v_add_f32 v{b+8+e}, v{b+8+e}, v{b+12+e}")
        for e in range(4):
            A(f"v_add_f32 v{b+e}, v{b+e}, v{b+8+e}")
        for e in range(4):
            A(f"v_add_f32 v{b+e}, s{44+e}, v{b+e}")
    for e in range(4):
        A(f"v_cndmask_b32 v{44+e}, 0, v{8+e}, s[40:41]")
        A(f"v_cndmask_b32 v{48+e}, 0, v{24+e}, s[42:43]")
    for e in range(4):
        A(f"v_add_f32 v{40+e}, v{44+e}, v{48+e}")
    def allreduce(regs, tmp):
        for ror in (1, 2, 4, 8):
            for r_ in regs:
                A(f"v_add_f32_dpp v{r_}, v{r_}, v{r_} row_ror:{ror} row_mask:0xf bank_mask:0xf")
            A("s_nop 1") if len(regs) < 3 else None
        for k, r_ in enumerate(regs):
            A(f"v_mov_b32 v{tmp+k}, v{r_}")
        A("s_nop 1")
        for k, r_ in enumerate(regs):
            A(f"v_permlane16_swap_b32 v{tmp+k}, v{r_}")
        A("s_nop 1")
        for k, r_ in enumerate(regs):
            A(f"v_add_f32 v{r_}, v{r_}, v{tmp+k}")
        for k, r_ in enumerate(regs):
            A(f"v_mov_b32 v{tmp+k}, v{r_}")
        A("s_nop 1")
        for k, r_ in enumerate(regs):
            A(f"v_permlane32_swap_b32 v{tmp+k}, v{r_}")
        A("s_nop 1")
        for k, r_ in enumerate(regs):
            A(f"v_add_f32 v{r_}, v{r_}, v{tmp+k}")
    allreduce([40, 41, 42, 43], 52)
    inv = struct.unpack("<I", struct.pack("<f", 1.0/493.0))[0]
    A(f"""
    v_lshlrev_b32 v6, 4, v1
    ds_write_b128 v6, v[40:43]
    s_waitcnt lgkmcnt(0)
    s_barrier
    v_mov_b32 v7, 0
    ds_read_b128 v[52:55], v7
    ds_read_b128 v[56:59], v7 offset:16
    ds_read_b128 v[60:63], v7 offset:32
    ds_read_b128 v[64:67], v7 offset:48
    s_mov_b32 s38, {inv:#x}
    s_waitcnt lgkmcnt(0)
    """)
    for e in range(4):
        A(f"v_add_f32 v{52+e}, v{52+e}, v{56+e}")
        A(f"v_add_f32 v{60+e}, v{60+e}, v{64+e}")
    for e in range(4):
        A(f"v_add_f32 v{52+e}, v{52+e}, v{60+e}")
    for e in range(4):
        A(f"v_mul_f32 v{52+e}, s38, v{52+e}")
    for e in range(4):
        A(f"v_sub_f32 v{8+e}, v{8+e}, v{52+e}")
        A(f"v_sub_f32 v{24+e}, v{24+e}, v{52+e}")
    for e in range(4):
        A(f"v_cndmask_b32 v{44+e}, 0, v{8+e}, s[40:41]")
        A(f"v_cndmask_b32 v{48+e}, 0, v{24+e}, s[42:43]")
    for e in range(4):
        A(f"v_mul_f32 v{40+e}, v{44+e}, v{44+e}")
    for e in range(4):
        A(f"v_fmac_f32 v{40+e}, v{48+e}, v{48+e}")
    allreduce([40, 41, 42, 43], 56)
    A(f"""
    ds_write_b128 v6, v[40:43] offset:64
    s_waitcnt lgkmcnt(0)
    s_barrier
    ds_read_b128 v[56:59], v7 offset:64
    ds_read_b128 v[60:63], v7 offset:80
    ds_read_b128 v[64:67], v7 offset:96
    ds_read_b128 v[68:71], v7 offset:112
    s_waitcnt lgkmcnt(0)
    """)
    for e in range(4):
        A(f"v_add_f32 v{56+e}, v{56+e}, v{60+e}")
        A(f"v_add_f32 v{64+e}, v{64+e}, v{68+e}")
    for e in range(4):
        A(f"v_add_f32 v{56+e}, v{56+e}, v{64+e}")
    eps = struct.unpack("<I", struct.pack("<f", 1e-5))[0]
    A(f"v_mov_b32 v60, {eps:#x}")
    for e in range(4):
        A(f"v_fma_f32 v{56+e}, v{56+e}, s38, v60")
    for e in range(4):
        A(f"v_rsq_f32 v{56+e}, v{56+e}")
    A("s_nop 0")
    for e in range(4):
        A(f"v_mul_f32 v{56+e}, s{48+e}, v{56+e}")
    c1 = struct.unpack("<I", struct.pack("<f", -2.0*0.7978845608028654*1.4426950408889634))[0]
    c2 = struct.unpack("<I", struct.pack("<f", 0.044715))[0]
    A(f"s_mov_b32 s56, {c1:#x}\ns_mov_b32 s57, {c2:#x}")
    for b in (8, 24):
        for e in range(4):
            A(f"v_mov_b32 v{60+e}, s{52+e}")
        for e in range(4):
            A(f"v_fma_f32 v{b+e}, v{b+e}, v{56+e}, v{60+e}")
        for e in range(4):
            A(f"v_mul_f32 v{60+e}, v{b+e}, v{b+e}")
        for e in range(4):
            A(f"v_fma_f32 v{60+e}, v{60+e}, s57, 1.0")
        for e in range(4):
            A(f"v_mul_f32 v{60+e}, v{60+e}, v{b+e}")
        for e in range(4):
            A(f"v_mul_f32 v{60+e}, s56, v{60+e}")
        for e in range(4):
            A(f"v_exp_f32 v{60+e}, v{60+e}")
        A("s_nop 0")
        for e in range(4):
            A(f"v_add_f32 v{60+e}, 1.0, v{60+e}")
        for e in range(4):
            A(f"v_rcp_f32 v{60+e}, v{60+e}")
        A("s_nop 0")
        for e in range(4):
            A(f"v_mul_f32 v{b+e}, v{b+e}, v{60+e}")
        A(f"v_cvt_pk_bf16_f32 v{b}, v{b}, v{b+1}")
        A(f"v_cvt_pk_bf16_f32 v{b+1}, v{b+2}, v{b+3}")
    A(f"""
    s_mul_i32 s31, s26, {493*1024}
    s_add_u32 s31, s31, s29
    v_lshlrev_b32 v4, 10, v4
    v_add_u32 v4, s31, v4
    v_add_u32 v5, 4096, v4
    s_mov_b64 s[44:45], exec
    s_mov_b64 exec, s[40:41]
    buffer_store_dwordx2 v[8:9], v4, s[12:15], 0 offen
    s_mov_b64 exec, s[42:43]
    buffer_store_dwordx2 v[24:25], v5, s[12:15], 0 offen
    s_mov_b64 exec, s[44:45]
    """)
    A("L_fin_end:")
    A("s_endpgm")

def build(timing=False):
    ref = open("cdna_kernels/%s.s.ref" % NAME).read().split("\n")
    hdr = [l for l in ref if l.startswith(";") and "@launch" not in l and "Override" not in l and "grid=ceil" not in l]
    out = "\n".join(hdr) + "\n"
    out += f"; @launch kernel=gemm_kernel grid=(256,1,1) block=(256,1,1) lds={LDS_BYTES}\n"
    out += f"; @launch kernel=fin_kernel grid=(256,1,1) block=(256,1,1) lds=1024\n"
    out += '.amdgcn_target "amdgcn-amd-amdhsa--gfx950"\n.text\n'
    for nm, fn in (("gemm_kernel", lambda A: gemm_kernel(A, timing)), ("fin_kernel", fin_kernel)):
        A = Asm(); fn(A)
        out += f".globl {nm}\n.p2align 8\n.type {nm},@function\n{nm}:\n" + A.text()
    out += '.section .rodata,"a"\n'
    for nm, vg in (("gemm_kernel", 128), ("fin_kernel", 80)):
        out += f""".p2align 6
.amdhsa_kernel {nm}
  .amdhsa_next_free_vgpr {vg}
  .amdhsa_next_free_sgpr 96
  .amdhsa_accum_offset {vg}
  .amdhsa_group_segment_fixed_size 0
  .amdhsa_float_denorm_mode_32 3
  .amdhsa_kernarg_size 64
  .amdhsa_user_sgpr_count 2
  .amdhsa_user_sgpr_kernarg_segment_ptr 1
  .amdhsa_system_sgpr_workgroup_id_x 1
.end_amdhsa_kernel
"""
    return out

if __name__ == "__main__":
    timing = "--timing" in sys.argv
    o = [a for a in sys.argv[1:] if not a.startswith("--")][0]
    open(o, "w").write(build(timing))
```

```python
import sys, struct

NAME = "standalone__self_sup_conv_stem_hubert__speech"
XBYTES = 2*1000*512*2
WBYTES = 15*512*512*2
OUTBYTES = 2*493*512*2
XREG = 35360
RING0 = 2*XREG
R = 22
D = 20
LDS_BYTES = RING0 + 4*R*1024

class Asm:
    def __init__(self): self.L = []
    def __call__(self, s):
        for ln in s.strip("\n").split("\n"): self.L.append("    " + ln.strip() if not ln.strip().endswith(":") else ln.strip())
    def raw(self, s): self.L.append(s)
    def text(self): return "\n".join(self.L) + "\n"

def steps_list():
    st = []
    for p in (0, 1):
        for c in range(4):
            taps = list(range(p, 15, 2))
            for a, i in enumerate(taps):
                st.append((p, c, a, i, len(taps)))
    return st

def gemm_kernel(A, timing=False, dbg=False):
    SX, SW, SWS = 8, 12, 16
    s_w = 20
    s_ring = 21
    s_xm0 = 22
    s_tmp = 23
    s_so = 24
    v_lane = 1
    v_xdma = 2
    v_wdma = 3
    v_w1 = 4
    v_w2 = 5
    v_xr = 6
    v_xr1 = 7
    v_st = 8
    WF = 12
    XF = 24
    ACC = 88
    A(f"""
    s_cmp_ge_u32 s2, 256
    s_cbranch_scc1 L_gemm_end
    s_load_dwordx4 s[4:7], s[0:1], 0
    s_load_dwordx2 s[16:17], s[0:1], 56
    v_lshrrev_b32 v9, 6, v0
    v_and_b32 v{v_lane}, 63, v0
    v_readfirstlane_b32 s{s_w}, v9
    """)
    if timing:
        A("s_memrealtime s[40:41]")
    A(f"""
    s_and_b32 s25, s2, 7
    s_lshr_b32 s26, s2, 3
    s_lshr_b32 s27, s25, 2            ; b
    s_and_b32 s28, s25, 3
    s_lshl_b32 s28, s28, 1
    s_and_b32 s29, s26, 1
    s_add_u32 s28, s28, s29           ; cb
    s_lshr_b32 s29, s26, 1
    s_and_b32 s29, s29, 3             ; kq
    s_lshr_b32 s30, s26, 3            ; rb
    """)
    A(f"""
    s_mul_i32 s31, s27, 1024000
    s_lshl_b32 s32, s30, 18
    s_add_u32 s31, s31, s32
    s_lshl_b32 s32, s29, 8
    s_add_u32 s31, s31, s32
    s_lshl_b32 s32, s{s_w}, 13
    s_add_u32 s31, s31, s32
    v_lshrrev_b32 v9, 4, v{v_lane}
    v_lshlrev_b32 v9, 11, v9
    v_and_b32 v10, 15, v{v_lane}
    v_lshlrev_b32 v10, 4, v10
    v_add3_u32 v{v_xdma}, v9, v10, s31
    """)
    A(f"""
    s_lshl_b32 s31, s29, 17
    s_lshl_b32 s32, s28, 7
    s_add_u32 s31, s31, s32
    s_lshl_b32 s32, s{s_w}, 5
    s_add_u32 s31, s31, s32
    v_lshrrev_b32 v9, 1, v{v_lane}
    v_lshrrev_b32 v10, 3, v9
    v_and_b32 v10, 1, v10
    v_lshlrev_b32 v10, 2, v10
    v_xor_b32 v9, v9, v10
    v_lshlrev_b32 v9, 10, v9
    v_and_b32 v10, 1, v{v_lane}
    v_lshlrev_b32 v10, 4, v10
    v_add3_u32 v{v_wdma}, v9, v10, s31
    """)
    A(f"""
    s_mul_i32 s{s_ring}, s{s_w}, {R*1024}
    s_add_u32 s{s_ring}, s{s_ring}, {RING0}
    s_lshl_b32 s31, s{s_w}, 10
    s_lshr_b32 s32, s{s_w}, 1
    s_lshl_b32 s32, s32, 5
    s_add_u32 s{s_xm0}, s31, s32       ; j=w: j*1024 + (j>>1)*32
    """)
    A(f"""
    v_lshrrev_b32 v9, 4, v{v_lane}          ; kg
    v_and_b32 v10, 1, v9
    v_lshlrev_b32 v10, 2, v10               ; 4*(kg&1)
    v_lshl_add_u32 v10, v9, 3, v10
    v_bfe_u32 v11, v{v_lane}, 2, 2          ; r'
    v_add_u32 v10, v10, v11
    v_lshlrev_b32 v10, 5, v10
    v_and_b32 v11, 3, v{v_lane}
    v_lshl_add_u32 v10, v11, 3, v10
    v_xor_b32 v11, 128, v10
    v_add_u32 v{v_w1}, s{s_ring}, v10
    v_add_u32 v{v_w2}, s{s_ring}, v11
    """)
    A(f"""
    v_and_b32 v10, 15, v{v_lane}
    v_mul_u32_u24 v10, {8*256+32}, v10
    v_lshl_add_u32 v{v_xr}, v9, 4, v10
    v_add_u32 v{v_xr1}, {XREG}, v{v_xr}
    """)
    A(f"""
    s_lshl_b32 s31, s27, 3
    s_add_u32 s31, s31, s28           ; g
    s_lshl_b32 s31, s31, 4
    s_lshl_b32 s32, s{s_w}, 2
    s_add_u32 s31, s31, s32           ; g*16 + 4w
    s_lshl_b32 s31, s31, 15
    s_lshl_b32 s32, s30, 2
    s_add_u32 s32, s32, s29           ; src
    s_lshl_b32 s32, s32, 11
    s_add_u32 s31, s31, s32
    v_lshlrev_b32 v9, 15, v9          ; kg*32768
    v_and_b32 v10, 15, v{v_lane}
    v_lshlrev_b32 v10, 4, v10
    v_add3_u32 v{v_st}, v9, v10, s31
    """)
    for k in range(32): A(f"v_mov_b32 v{ACC+k}, 0")
    A(f"""
    s_waitcnt lgkmcnt(0)
    s_mov_b32 s{SX}, s4
    s_mov_b32 s{SX+1}, s5
    s_mov_b32 s{SX+2}, {XBYTES}
    s_mov_b32 s{SX+3}, 0x20000
    s_mov_b32 s{SW}, s6
    s_mov_b32 s{SW+1}, s7
    s_mov_b32 s{SW+2}, {WBYTES}
    s_mov_b32 s{SW+3}, 0x20000
    s_mov_b32 s{SWS+2}, {16*16*32768}
    s_mov_b32 s{SWS+3}, 0x20000
    """)
    steps = steps_list()
    NS = len(steps)
    vm = []
    def wdma(j):
        p, c, a, i, nt = steps[j]
        A(f"s_mov_b32 s{s_so}, {i*524288 + c*32768}")
        A(f"s_add_u32 m0, s{s_ring}, {(j % R)*1024}")
        A(f"buffer_load_dwordx4 v{v_wdma}, s[{SW}:{SW+3}], s{s_so} offen lds")
        vm.append(("w", j))
    def xdma(p, jj):
        if jj < 8:
            A(f"s_mov_b32 s{s_so}, {jj*32768 + p*1024}")
            A(f"s_add_u32 m0, s{s_xm0}, {p*XREG + jj*(4096+64)}")
        else:
            A(f"s_and_b32 s{s_tmp}, s{s_w}, 2")
            A(f"s_lshl_b32 s{s_so}, s{s_tmp}, 13")
            A(f"s_sub_u32 s{s_so}, {jj*32768 + p*1024}, s{s_so}")
            A(f"s_lshr_b32 s{s_tmp}, s{s_tmp}, 1")
            A(f"s_mul_i32 s{s_tmp}, s{s_tmp}, {2048+32}")
            A(f"s_sub_u32 s{s_tmp}, s{s_xm0}, s{s_tmp}")
            A(f"s_add_u32 m0, s{s_tmp}, {p*XREG + jj*(4096+64)}")
        A(f"buffer_load_dwordx4 v{v_xdma}, s[{SX}:{SX+3}], s{s_so} offen lds")
        vm.append(("x", p, jj))
    def vmwait_for(tag):
        idx = vm.index(tag)
        n = len(vm) - 1 - idx
        return f"s_waitcnt vmcnt({n})"
    wdma(0); wdma(1)
    for jj in range(9): xdma(0, jj)
    for j in range(2, D): wdma(j)
    if timing:
        A("s_memrealtime s[42:43]")
    A(vmwait_for(("x", 0, 8)))
    A("s_barrier")
    if timing:
        A("s_memrealtime s[44:45]")
        A("s_memtime s[50:51]")
    chunks = []
    j0 = 0
    for p in (0, 1):
        for c in range(4):
            nt = 8 if p == 0 else 7
            chunks.append((p, c, nt, j0)); j0 += nt
    base = []
    bcur = 0
    for (p, c, nt, j0) in chunks:
        base.append(bcur); bcur += nt + 7
    def xslot(ci, u): return XF + 4*((base[ci] + u) % 16)
    def xread(ci, u):
        p, c, nt, _ = chunks[ci]
        off = u*256 + (u >> 3)*32 + c*64
        va = v_xr if p == 0 else v_xr1
        s = xslot(ci, u)
        return f"ds_read_b128 v[{s}:{s+3}], v{va} offset:{off}"
    def wread(j):
        b = WF + 4*(j % 3)
        off = (j % R)*1024
        return [f"ds_read_b64_tr_b16 v[{b}:{b+1}], v{v_w1} offset:{off}",
                f"ds_read_b64_tr_b16 v[{b+2}:{b+3}], v{v_w2} offset:{off}"]
    xl = []
    for ci, (p, c, nt, j0) in enumerate(chunks):
        for u in range(nt + 7):
            first_use = j0 + max(0, u - 7)
            xl.append((ci, u, first_use))
    def last_use(ci, u):
        p, c, nt, j0 = chunks[ci]
        return j0 + min(u, nt - 1)
    lg = []
    out_lines = []
    issued = set()
    A(vmwait_for(("w", 1)))
    for ln in wread(0): A(ln); lg.append(("w", 0))
    for u in range(8): A(xread(0, u)); lg.append(("x", 0, u)); issued.add((0, u))
    for ln in wread(1): A(ln); lg.append(("w", 1))
    nxt = 8
    xodd_barrier_done = False
    xodd_list = list(range(9))
    for j, (p, c, a, i, nt) in enumerate(steps):
        ci = p*4 + c
        fills = []
        dm = None
        if j + D < NS: dm = ("w", j + D)
        xo = None
        if j < 9: xo = j
        xr = []
        budget = 2
        while nxt < len(xl) and budget > 0:
            c2, u2, fu = xl[nxt]
            if chunks[c2][0] == 1 and not xodd_barrier_done: break
            if nxt >= 16:
                pc, pu, _ = xl[nxt - 16]
                if last_use(pc, pu) >= j: break
            xr.append((c2, u2)); nxt += 1; budget -= 1
        do_bar = (j == 22)
        need = [("w", j)] + [("x", ci, a + t) for t in range(8)]
        last_needed = max(len(lg) - 1 - lg[::-1].index(n) for n in need)
        nwait = len(lg) - 1 - last_needed
        A(f"s_waitcnt lgkmcnt({min(nwait,15)})")
        wb = WF + 4*(j % 3)
        mf = []
        for t in range(8):
            xs = xslot(ci, a + t)
            acc = ACC + 4*t
            mf.append(f"v_mfma_f32_16x16x32_bf16 v[{acc}:{acc+3}], v[{wb}:{wb+3}], v[{xs}:{xs+3}], v[{acc}:{acc+3}]")
        slots = [[] for _ in range(8)]
        if j + 2 < NS:
            slots[0].append(("vmw", j + 2))
            wr = wread(j + 2)
            slots[0].append(("i", wr[0])); slots[0].append(("lg", ("w0", j + 2))); slots[1].append(("i", wr[1])); slots[1].append(("lg", ("w", j + 2)))
        k = 2
        for (c2, u2) in xr:
            slots[k].append(("i", xread(c2, u2))); slots[k].append(("lg", ("x", c2, u2))); k += 1
        if dm: slots[4].append(("wdma", j + D))
        if xo is not None: slots[6].append(("xdma", xo))
        if do_bar: slots[7].append(("bar",))
        for t in range(8):
            A(mf[t])
            for it in slots[t]:
                if it[0] == "i": A(it[1])
                elif it[0] == "lg": lg.append(it[1])
                elif it[0] == "vmw": A(vmwait_for(("w", it[1])))
                elif it[0] == "wdma": wdma(it[1])
                elif it[0] == "xdma": xdma(1, it[1])
                elif it[0] == "bar":
                    A(vmwait_for(("x", 1, 8)))
                    A("s_barrier")
                    xodd_barrier_done = True
    assert nxt == len(xl), (nxt, len(xl))
    if timing:
        A("s_memrealtime s[46:47]")
        A("s_memtime s[52:53]")
    A("s_nop 7")
    for t in range(8):
        acc = ACC + 4*t
        A(f"buffer_store_dwordx4 v[{acc}:{acc+3}], v{v_st}, s[{SWS}:{SWS+3}], 0 offen offset:{t*256}")
    if timing:
        A("s_waitcnt vmcnt(0)")
        A("s_memrealtime s[48:49]")
        A("s_waitcnt lgkmcnt(0)")
        A(f"""
        s_mov_b32 s{SWS+2}, 0x10000000
        s_lshl_b32 s31, s2, 2
        s_add_u32 s31, s31, s{s_w}
        s_lshl_b32 s31, s31, 5
        s_add_u32 s31, s31, 0x1000000
        v_mov_b32 v9, s31
        v_mov_b32 v12, s40
        v_mov_b32 v13, s42
        v_mov_b32 v14, s44
        v_mov_b32 v15, s46
        v_mov_b32 v16, s48
        s_sub_u32 s52, s52, s50
        v_mov_b32 v17, s52
        s_getreg_b32 s36, hwreg(HW_REG_XCC_ID)
        v_mov_b32 v18, s36
        s_getreg_b32 s36, hwreg(HW_REG_HW_ID)
        v_mov_b32 v19, s36
        v_cmp_eq_u32 vcc, 0, v{v_lane}
        s_and_saveexec_b64 s[34:35], vcc
        buffer_store_dwordx4 v[12:15], v9, s[{SWS}:{SWS+3}], 0 offen
        buffer_store_dwordx4 v[16:19], v9, s[{SWS}:{SWS+3}], 0 offen offset:16
        """)
    if dbg:
        A("""
        s_load_dwordx2 s[56:57], s[0:1], 48
        s_waitcnt lgkmcnt(0)
        s_mov_b32 s58, 256
        s_mov_b32 s59, 0x20000
        s_mov_b64 exec, 1
        v_mov_b32 v9, 0
        """)
        for k, sr in enumerate((40, 42, 44, 46, 48)):
            A(f"v_mov_b32 v12, s{sr}")
            A(f"buffer_atomic_umax v12, v9, s[56:59], 0 offen offset:{k*8}")
            A(f"v_not_b32 v13, v12")
            A(f"buffer_atomic_umax v13, v9, s[56:59], 0 offen offset:{k*8+4}")
        A("v_mov_b32 v12, s52")
        A("buffer_atomic_umax v12, v9, s[56:59], 0 offen offset:40")
        A("v_not_b32 v13, v12")
        A("buffer_atomic_umax v13, v9, s[56:59], 0 offen offset:44")
        A("s_waitcnt vmcnt(0)")
    A("L_gemm_end:")
    A("s_endpgm")

def fin_kernel(A):
    SWS, SO = 8, 12
    A(f"""
    s_cmp_ge_u32 s2, 256
    s_cbranch_scc1 L_fin_end
    s_load_dwordx4 s[16:19], s[0:1], 16
    s_load_dwordx4 s[20:23], s[0:1], 32
    s_load_dwordx2 s[8:9], s[0:1], 56        ; ws
    v_lshrrev_b32 v1, 6, v0
    v_and_b32 v2, 63, v0                     ; lane
    s_lshr_b32 s24, s2, 4                    ; g
    s_and_b32 s25, s2, 15                    ; o
    s_lshr_b32 s26, s24, 3                   ; b
    s_and_b32 s27, s24, 7                    ; cb
    s_lshl_b32 s28, s2, 15
    v_lshlrev_b32 v3, 13, v1
    v_lshl_add_u32 v3, v2, 4, v3
    v_add_u32 v3, s28, v3
    s_lshl_b32 s29, s27, 6
    s_lshl_b32 s30, s25, 2
    s_add_u32 s29, s29, s30
    s_lshl_b32 s29, s29, 1                   ; *2 bytes
    s_waitcnt lgkmcnt(0)
    s_mov_b32 s10, {16*16*32768}
    s_mov_b32 s11, 0x20000
    s_add_u32 s16, s16, s29
    s_addc_u32 s17, s17, 0
    s_add_u32 s18, s18, s29
    s_addc_u32 s19, s19, 0
    s_add_u32 s20, s20, s29
    s_addc_u32 s21, s21, 0
    s_load_dwordx2 s[32:33], s[16:17], 0
    s_load_dwordx2 s[34:35], s[18:19], 0     ; gamma
    s_load_dwordx2 s[36:37], s[20:21], 0     ; beta
    s_mov_b32 s12, s22
    s_mov_b32 s13, s23
    s_mov_b32 s14, {OUTBYTES}
    s_mov_b32 s15, 0x20000
    """)
    for h in range(2):
        for kq in range(4):
            b = 8 + (h*4 + kq)*4
            off = kq*2048 + h*1024
            A(f"buffer_load_dwordx4 v[{b}:{b+3}], v3, s[8:11], 0 offen offset:{off}" if off < 4096 else
              f"s_mov_b32 s31, {off}\nbuffer_load_dwordx4 v[{b}:{b+3}], v3, s[8:11], s31 offen")
    A(f"""
    v_and_b32 v4, 15, v2
    v_lshlrev_b32 v4, 3, v4
    v_lshrrev_b32 v5, 4, v2
    v_add_u32 v4, v4, v5
    v_lshl_add_u32 v4, v1, 7, v4            ; l for h=0
    v_add_u32 v5, 4, v4                     ; l for h=1
    v_cmp_gt_u32 s[40:41], 493, v4 
    """.replace("v_cmp_gt_u32 s[40:41], 493, v4", "s_movk_i32 s38, 493\nv_cmp_gt_u32 s[40:41], s38, v4\nv_cmp_gt_u32 s[42:43], s38, v5"))
    A("s_waitcnt lgkmcnt(0)")
    for k, src in enumerate((32, 34, 36)):
        d = 44 + 4*k
        A(f"""
        s_lshl_b32 s{d}, s{src}, 16
        s_and_b32 s{d+1}, s{src}, 0xffff0000
        s_lshl_b32 s{d+2}, s{src+1}, 16
        s_and_b32 s{d+3}, s{src+1}, 0xffff0000
        """)
    A("s_waitcnt vmcnt(0)")
    for h in range(2):
        b = 8 + h*16
        for e in range(4):
            A(f"v_add_f32 v{b+e}, v{b+e}, v{b+4+e}")
            A(f"v_add_f32 v{b+8+e}, v{b+8+e}, v{b+12+e}")
        for e in range(4):
            A(f"v_add_f32 v{b+e}, v{b+e}, v{b+8+e}")
        for e in range(4):
            A(f"v_add_f32 v{b+e}, s{44+e}, v{b+e}")
    for e in range(4):
        A(f"v_cndmask_b32 v{44+e}, 0, v{8+e}, s[40:41]")
        A(f"v_cndmask_b32 v{48+e}, 0, v{24+e}, s[42:43]")
    for e in range(4):
        A(f"v_add_f32 v{40+e}, v{44+e}, v{48+e}")
    def allreduce(regs, tmp):
        for ror in (1, 2, 4, 8):
            for r_ in regs:
                A(f"v_add_f32_dpp v{r_}, v{r_}, v{r_} row_ror:{ror} row_mask:0xf bank_mask:0xf")
            A("s_nop 1") if len(regs) < 3 else None
        for k, r_ in enumerate(regs):
            A(f"v_mov_b32 v{tmp+k}, v{r_}")
        A("s_nop 1")
        for k, r_ in enumerate(regs):
            A(f"v_permlane16_swap_b32 v{tmp+k}, v{r_}")
        A("s_nop 1")
        for k, r_ in enumerate(regs):
            A(f"v_add_f32 v{r_}, v{r_}, v{tmp+k}")
        for k, r_ in enumerate(regs):
            A(f"v_mov_b32 v{tmp+k}, v{r_}")
        A("s_nop 1")
        for k, r_ in enumerate(regs):
            A(f"v_permlane32_swap_b32 v{tmp+k}, v{r_}")
        A("s_nop 1")
        for k, r_ in enumerate(regs):
            A(f"v_add_f32 v{r_}, v{r_}, v{tmp+k}")
    allreduce([40, 41, 42, 43], 52)
    inv = struct.unpack("<I", struct.pack("<f", 1.0/493.0))[0]
    A(f"""
    v_lshlrev_b32 v6, 4, v1
    ds_write_b128 v6, v[40:43]
    s_waitcnt lgkmcnt(0)
    s_barrier
    v_mov_b32 v7, 0
    ds_read_b128 v[52:55], v7
    ds_read_b128 v[56:59], v7 offset:16
    ds_read_b128 v[60:63], v7 offset:32
    ds_read_b128 v[64:67], v7 offset:48
    s_mov_b32 s38, {inv:#x}
    s_waitcnt lgkmcnt(0)
    """)
    for e in range(4):
        A(f"v_add_f32 v{52+e}, v{52+e}, v{56+e}")
        A(f"v_add_f32 v{60+e}, v{60+e}, v{64+e}")
    for e in range(4):
        A(f"v_add_f32 v{52+e}, v{52+e}, v{60+e}")
    for e in range(4):
        A(f"v_mul_f32 v{52+e}, s38, v{52+e}")
    for e in range(4):
        A(f"v_sub_f32 v{8+e}, v{8+e}, v{52+e}")
        A(f"v_sub_f32 v{24+e}, v{24+e}, v{52+e}")
    for e in range(4):
        A(f"v_cndmask_b32 v{44+e}, 0, v{8+e}, s[40:41]")
        A(f"v_cndmask_b32 v{48+e}, 0, v{24+e}, s[42:43]")
    for e in range(4):
        A(f"v_mul_f32 v{40+e}, v{44+e}, v{44+e}")
    for e in range(4):
        A(f"v_fmac_f32 v{40+e}, v{48+e}, v{48+e}")
    allreduce([40, 41, 42, 43], 56)
    A(f"""
    ds_write_b128 v6, v[40:43] offset:64
    s_waitcnt lgkmcnt(0)
    s_barrier
    ds_read_b128 v[56:59], v7 offset:64
    ds_read_b128 v[60:63], v7 offset:80
    ds_read_b128 v[64:67], v7 offset:96
    ds_read_b128 v[68:71], v7 offset:112
    s_waitcnt lgkmcnt(0)
    """)
    for e in range(4):
        A(f"v_add_f32 v{56+e}, v{56+e}, v{60+e}")
        A(f"v_add_f32 v{64+e}, v{64+e}, v{68+e}")
    for e in range(4):
        A(f"v_add_f32 v{56+e}, v{56+e}, v{64+e}")
    eps = struct.unpack("<I", struct.pack("<f", 1e-5))[0]
    A(f"v_mov_b32 v60, {eps:#x}")
    for e in range(4):
        A(f"v_fma_f32 v{56+e}, v{56+e}, s38, v60")
    for e in range(4):
        A(f"v_rsq_f32 v{56+e}, v{56+e}")
    A("s_nop 0")
    for e in range(4):
        A(f"v_mul_f32 v{56+e}, s{48+e}, v{56+e}")
    c1 = struct.unpack("<I", struct.pack("<f", -2.0*0.7978845608028654*1.4426950408889634))[0]
    c2 = struct.unpack("<I", struct.pack("<f", 0.044715))[0]
    A(f"s_mov_b32 s56, {c1:#x}\ns_mov_b32 s57, {c2:#x}")
    for b in (8, 24):
        for e in range(4):
            A(f"v_mov_b32 v{60+e}, s{52+e}")
        for e in range(4):
            A(f"v_fma_f32 v{b+e}, v{b+e}, v{56+e}, v{60+e}")
        for e in range(4):
            A(f"v_mul_f32 v{60+e}, v{b+e}, v{b+e}")
        for e in range(4):
            A(f"v_fma_f32 v{60+e}, v{60+e}, s57, 1.0")
        for e in range(4):
            A(f"v_mul_f32 v{60+e}, v{60+e}, v{b+e}")
        for e in range(4):
            A(f"v_mul_f32 v{60+e}, s56, v{60+e}")
        for e in range(4):
            A(f"v_exp_f32 v{60+e}, v{60+e}")
        A("s_nop 0")
        for e in range(4):
            A(f"v_add_f32 v{60+e}, 1.0, v{60+e}")
        for e in range(4):
            A(f"v_rcp_f32 v{60+e}, v{60+e}")
        A("s_nop 0")
        for e in range(4):
            A(f"v_mul_f32 v{b+e}, v{b+e}, v{60+e}")
        A(f"v_cvt_pk_bf16_f32 v{b}, v{b}, v{b+1}")
        A(f"v_cvt_pk_bf16_f32 v{b+1}, v{b+2}, v{b+3}")
    A(f"""
    s_mul_i32 s31, s26, {493*1024}
    s_add_u32 s31, s31, s29
    v_lshlrev_b32 v4, 10, v4
    v_add_u32 v4, s31, v4
    v_add_u32 v5, 4096, v4
    s_mov_b64 s[44:45], exec
    s_mov_b64 exec, s[40:41]
    buffer_store_dwordx2 v[8:9], v4, s[12:15], 0 offen
    s_mov_b64 exec, s[42:43]
    buffer_store_dwordx2 v[24:25], v5, s[12:15], 0 offen
    s_mov_b64 exec, s[44:45]
    """)
    A("L_fin_end:")
    A("s_endpgm")

def build(timing=False, dbg=False):
    ref = open("cdna_kernels/%s.s.ref" % NAME).read().split("\n")
    hdr = [l for l in ref if l.startswith(";") and "@launch" not in l and "Override" not in l and "grid=ceil" not in l]
    out = "\n".join(hdr) + "\n"
    out += f"; @launch kernel=gemm_kernel grid=(256,1,1) block=(256,1,1) lds={LDS_BYTES}\n"
    out += f"; @launch kernel=fin_kernel grid=(256,1,1) block=(256,1,1) lds=1024\n"
    out += '.amdgcn_target "amdgcn-amd-amdhsa--gfx950"\n.text\n'
    for nm, fn in (("gemm_kernel", lambda A: gemm_kernel(A, timing or dbg, dbg)), ("fin_kernel", fin_kernel)):
        A = Asm(); fn(A)
        out += f".globl {nm}\n.p2align 8\n.type {nm},@function\n{nm}:\n" + A.text()
    out += '.section .rodata,"a"\n'
    for nm, vg in (("gemm_kernel", 128), ("fin_kernel", 80)):
        out += f""".p2align 6
.amdhsa_kernel {nm}
  .amdhsa_next_free_vgpr {vg}
  .amdhsa_next_free_sgpr 96
  .amdhsa_accum_offset {vg}
  .amdhsa_group_segment_fixed_size 0
  .amdhsa_float_denorm_mode_32 3
  .amdhsa_kernarg_size 64
  .amdhsa_user_sgpr_count 2
  .amdhsa_user_sgpr_kernarg_segment_ptr 1
  .amdhsa_system_sgpr_workgroup_id_x 1
.end_amdhsa_kernel
"""
    return out

if __name__ == "__main__":
    timing = "--timing" in sys.argv
    o = [a for a in sys.argv[1:] if not a.startswith("--")][0]
    open(o, "w").write(build(timing, "--dbg" in sys.argv))
```
